```python
import torch

def _softmax(x, axis=-1):
    return torch.softmax(x, dim=axis)
def _gelu(x):
    return torch.nn.functional.gelu(x, approximate="tanh")
def _silu(x):
    return torch.nn.functional.silu(x)
def _sigmoid(x):
    return torch.sigmoid(x)
def _layernorm(x, axis=-1, eps=1e-5):
    m = x.mean(dim=axis, keepdim=True)
    v = x.var(dim=axis, keepdim=True, unbiased=False)
    return (x - m) / torch.sqrt(v + eps)
def _scatter_add(tgt, idx, src, axis=0):
    return tgt.clone().index_add_(axis, idx, src)
def _segment_sum(src, seg, n):
    out = torch.zeros((n,) + src.shape[1:], dtype=src.dtype)
    return out.index_add_(0, seg, src)
def _pad(x, pw):
    flat = tuple(v for pair in reversed(pw) for v in pair)
    return torch.nn.functional.pad(x, flat)

kernel_name = 'recurrent_scan__grouped_kv_mqa__swiglu_ffn__prompt'

def setup_inputs():

    _w = (lambda a: (lambda t: t.to(torch.bfloat16) if t.is_floating_point() else t)(torch.as_tensor(a)))
    def _A_setup():
        B, S, D, H = 1, 2048, 512, 32
        Dh = D // H
        return {
            "x": _w((lambda *s: torch.randn(*s, dtype=torch.bfloat16) * 0.05)(B, S, D)),
            "wq": _w((lambda *s: torch.randn(*s, dtype=torch.bfloat16) * 0.05)(D, H * Dh)),
            "wk": _w((lambda *s: torch.randn(*s, dtype=torch.bfloat16) * 0.05)(D, Dh)),
            "wv": _w((lambda *s: torch.randn(*s, dtype=torch.bfloat16) * 0.05)(D, Dh)),
            "wo": _w((lambda *s: torch.randn(*s, dtype=torch.bfloat16) * 0.05)(H * Dh, D)),
        }
    _A_in = _A_setup()

    def _B_setup():
        B, S, D, F = 1, 2048, 512, 1792
        return {
            "x": _w((lambda *s: torch.randn(*s, dtype=torch.bfloat16) * 0.05)(B, S, D)),
            "w_gate": _w((lambda *s: torch.randn(*s, dtype=torch.bfloat16) * 0.05)(D, F)),
            "w_up": _w((lambda *s: torch.randn(*s, dtype=torch.bfloat16) * 0.05)(D, F)),
            "w_down": _w((lambda *s: torch.randn(*s, dtype=torch.bfloat16) * 0.05)(F, D)),
        }
    _B_in = _B_setup()

    return {
        "A_x": _A_in["x"],
        "A_wq": _A_in["wq"],
        "A_wk": _A_in["wk"],
        "A_wv": _A_in["wv"],
        "A_wo": _A_in["wo"],
        "B_x": _B_in["x"],
        "B_w_gate": _B_in["w_gate"],
        "B_w_up": _B_in["w_up"],
        "B_w_down": _B_in["w_down"],
    }

def reference(A_x, A_wq, A_wk, A_wv, A_wo, B_x, B_w_gate, B_w_up, B_w_down):
    def _A_ref(x, wq, wk, wv, wo):
        B, S, D = x.shape
        H = 32
        Dh = D // H
        q = (lambda x, *d: x.permute(*d))((x @ wq).reshape(B, S, H, Dh), 0, 2, 1, 3)
        k = x @ wk
        v = x @ wv
        scores = torch.einsum("bhqd,bkd->bhqk", q, k) * (Dh ** -0.5)
        p = _softmax(scores, axis=-1)
        o = torch.einsum("bhqk,bkd->bhqd", p, v)
        return (lambda x, *d: x.permute(*d))(o, 0, 2, 1, 3).reshape(B, S, H * Dh) @ wo

    def _B_ref(x, w_gate, w_up, w_down):
        g = _silu(x @ w_gate)
        u = x @ w_up
        return (g * u) @ w_down

    x = A_x
    xn = _layernorm(x, axis=-1)
    s = _A_ref(xn, A_wq, A_wk, A_wv, A_wo)
    g = _silu(_B_ref(xn, B_w_gate, B_w_up, B_w_down))
    return x + s * g
```

```python
import re

class Asm:
    def __init__(self):
        self.lines = []
    def __call__(self, s):
        for l in s.strip("\n").split("\n"):
            self.lines.append(l.rstrip())
    def label(self, name):
        self.lines.append(name + ":")
    def text(self):
        return "\n".join(self.lines) + "\n"

class Alloc:
    def __init__(self, prefix, start, limit):
        self.p, self.n, self.limit = prefix, start, limit
        self.hi = start
    def get(self, count=1, align=1):
        n = (self.n + align - 1) // align * align
        assert n + count <= self.limit, f"out of {self.p} registers ({n}+{count})"
        self.n = n + count
        self.hi = max(self.hi, self.n)
        return n

def vr(n, c=1): return f"v{n}" if c == 1 else f"v[{n}:{n+c-1}]"
def sr(n, c=1): return f"s{n}" if c == 1 else f"s[{n}:{n+c-1}]"

_REG = re.compile(r"\b([vsa])(\d+)\b|\b([vsa])\[(\d+):(\d+)\]|\b(vcc|exec|m0|scc)\b")
TRANS = ("v_exp_", "v_log_", "v_rcp_", "v_rsq_", "v_sqrt_", "v_sin_", "v_cos_")

def regs_of(op):
    out = []
    for m in _REG.finditer(op):
        if m.group(1): out.append((m.group(1), int(m.group(2))))
        elif m.group(3): out += [(m.group(3), i) for i in range(int(m.group(4)), int(m.group(5)) + 1)]
        else: out.append((m.group(6), 0))
    return out

class Ins:
    def __init__(self, text):
        self.text = text
        t = text.split(";")[0].strip()
        self.op = t.split()[0]
        rest = t[len(self.op):].strip()
        ops = [o.strip() for o in re.split(r",(?![^\[]*\])", rest)] if rest else []
        self.ops = ops
        op = self.op
        self.is_mfma = op.startswith("v_mfma") or op.startswith("v_smfmac")
        self.is_dot = op.startswith("v_dot")
        self.is_valu = op.startswith("v_") and not self.is_mfma
        self.is_trans = op.startswith(TRANS)
        self.is_vmem = op.startswith(("buffer_", "global_", "flat_"))
        self.is_ds = op.startswith("ds_")
        self.is_salu = op.startswith("s_")
        self.defs, self.uses = [], []
        R = [regs_of(o) for o in ops]
        self.srcc = []; self.srcab = []
        if self.is_mfma:
            self.defs = R[0]
            self.srcab = R[1] + R[2]
            self.srcc = R[0] if op.startswith("v_smfmac") else (R[3] if len(R) > 3 else [])
            self.uses = self.srcab + self.srcc + (R[3] if op.startswith("v_smfmac") else [])
            self.passes = 8 if "32x32" in op else 4
        elif self.is_valu:
            if op.startswith("v_cmp"):
                self.defs = R[0]; self.uses = sum(R[1:], [])
                if op.startswith("v_cmpx"): self.defs = self.defs + [("exec", 0)]
            elif op.startswith(("v_permlane16_swap", "v_permlane32_swap")):
                self.defs = R[0] + R[1]; self.uses = R[0] + R[1]
            elif op.startswith(("v_add_co", "v_sub_co", "v_addc_co")):
                self.defs = R[0] + R[1]; self.uses = sum(R[2:], [])
            else:
                self.defs = R[0]; self.uses = sum(R[1:], [])
                if op.startswith(("v_fmac", "v_dot2c", "v_mac", "v_pk_fmac")): self.uses = self.uses + R[0]
                if op.startswith("v_cndmask") and len(ops) == 3: self.uses = self.uses + [("vcc", 0)]
        elif self.is_vmem:
            lds = " lds" in (" " + rest)
            if "store" in op or ("atomic" in op):
                self.uses = sum(R, []); self.store_data = R[0] if op.startswith("buffer_") else R[1]
            elif lds:
                self.uses = sum(R, []) + [("m0", 0)]
            else:
                self.defs = R[0]; self.uses = sum(R[1:], [])
            self.lds_dma = lds
        elif self.is_ds:
            if op.startswith(("ds_read", "ds_bpermute", "ds_permute", "ds_swizzle")) or "_rtn" in op:
                self.defs = R[0]; self.uses = sum(R[1:], [])
            else:
                self.uses = sum(R, [])
        elif self.is_salu:
            if op.startswith(("s_cmp", "s_waitcnt", "s_barrier", "s_nop", "s_cbranch", "s_branch", "s_endpgm", "s_setprio", "s_sleep", "s_bitcmp")):
                self.uses = sum(R, [])
            else:
                self.defs = R[0] if R else []; self.uses = sum(R[1:], [])
        self.states = 1
        if op == "s_nop": self.states = int(ops[0], 0) + 1

def check_linear(lines, name=""):
    ins = []
    for l in lines:
        t = l.split(";")[0].strip()
        if not t or t.endswith(":") or t.startswith("."): continue
        ins.append(Ins(t))
    errs = []
    for i, b in enumerate(ins):
        dist = 0
        for j in range(i - 1, max(-1, i - 24), -1):
            a = ins[j]
            need = 0; why = ""
            ad = set(a.defs); bu = set(b.uses); bd = set(b.defs)
            vd = {r for r in ad if r[0] in "va" and r[0] != "vcc"}
            vd = {r for r in ad if r[0] in ("v", "a")}
            sd = {r for r in ad if r[0] in ("s", "vcc")}
            if a.is_valu:
                if b.is_mfma and vd & bu: need, why = 2, "VALU->MFMA"
                if a.is_trans and b.is_valu and not b.is_trans and vd & bu: need, why = max(need, 1), "trans->VALU"
                if a.is_trans and b.is_trans and vd & bu: need, why = max(need, 1), "trans->trans"
                if b.op.startswith(("v_readlane", "v_readfirstlane")) and vd & bu: need, why = max(need, 1), "VALU->readlane"
                if b.op.startswith("v_permlane") and vd & bu: need, why = max(need, 2), "VALU->permlane"
                if "dpp" in b.text and vd & bu: need, why = max(need, 2), "VALU->DPP"
                if sd & bu:
                    if b.is_vmem: need, why = max(need, 5), "VALU sgpr->VMEM"
                    elif b.is_valu or b.is_mfma: need, why = max(need, 2), "VALU sgpr->VALU"
                    elif b.is_salu: need, why = max(need, 4 if not b.op.startswith("s_cbranch") else 5), "VALU sgpr->SALU"
                if sd and b.op in ("s_cbranch_vccz", "s_cbranch_vccnz") and ("vcc", 0) in sd: need, why = max(need, 5), "VALU vcc->branch"
                if ("exec", 0) in ad and (b.is_mfma or b.is_valu): need, why = max(need, 4), "VALU exec"
            if a.is_mfma:
                P = a.passes
                if b.is_mfma:
                    if vd & set(b.srcab): need, why = (8 if P == 4 else 12), "MFMA D->MFMA A/B"
                    elif vd & set(b.srcc) and not (set(a.defs) == set(b.srcc) and a.passes == b.passes): need, why = (6 if P == 4 else 10), "MFMA D->other C"
                    elif vd & bd and not (set(a.defs) == set(b.srcc)) : need, why = (6 if P == 4 else 10), "MFMA D->MFMA D (WAW)"
                elif (b.is_valu or b.is_vmem or b.is_ds) and vd & (bu | bd): need, why = (8 if P == 4 else 12), "MFMA D->VALU/VMEM/DS"
                if b.is_valu and set(a.srcc) & bd: need, why = max(need, 3 if P == 4 else 7), "MFMA C WAR"
            if a.is_salu and ("m0", 0) in ad and b.is_vmem and getattr(b, "lds_dma", False): need, why = max(need, 1), "m0->DMA"
            if a.is_vmem and hasattr(a, "store_data") and len(a.store_data) >= 3 and b.is_valu and set(a.store_data) & bd:
                need, why = max(need, 2), "store data WAR"
            if a.is_dot and not b.is_dot and vd & (bu | bd): need, why = max(need, 3), "dot->other"
            if need > dist:
                errs.append(f"{name}: {why} needs {need}, has {dist}: [{a.text}] -> [{b.text}]")
            dist += a.states
            if dist >= 20: break
    return errs
```

```python
from asm import *

WS_QF  = 0
WS_KF  = 2 << 20
WS_VF  = WS_KF + 65536
WS_HF  = 4 << 20
WS_WDF = 12 << 20
WS_WOF = 14 << 20
WS_OF  = 15 << 20
WS_GF  = 17 << 20
WS_SIZE = 20 << 20
SRD3 = 0x00020000
LOG2E = 1.4426950408889634

import struct
def f2u(x): return struct.unpack("<I", struct.pack("<f", x))[0]

def srd(a, dst, ptr, nbytes):
    a(f"  s_mov_b32 s{dst}, s{ptr}\n  s_mov_b32 s{dst+1}, s{ptr+1}\n  s_mov_b32 s{dst+2}, {hex(nbytes)}\n  s_mov_b32 s{dst+3}, {hex(SRD3)}")

def entry(a, name):
    a(f".globl {name}\n.p2align 8\n.type {name},@function\n{name}:")

def ids(a, name, sW, sRb, sCb, vLane, tmp):
    a(f"""
  s_cmp_ge_u32 s2, 256
  s_cbranch_scc1 {name}_exit
  v_lshrrev_b32 v{tmp}, 6, v0
  v_and_b32 v{vLane}, 63, v0
  v_readfirstlane_b32 s{sW}, v{tmp}
  s_and_b32 s{sRb}, s2, 4
  s_lshl_b32 s{sRb}, s{sRb}, 1
  s_bfe_u32 s{sCb}, s2, 0x30003
  s_or_b32 s{sRb}, s{sRb}, s{sCb}
  s_and_b32 s{sCb}, s2, 3
  s_lshl_b32 s{sCb}, s{sCb}, 2
  s_lshr_b32 s3, s2, 6
  s_or_b32 s{sCb}, s{sCb}, s3
""")

def kd(name, vgpr, sgpr):
    acc = (vgpr + 3) // 4 * 4
    return f""".amdhsa_kernel {name}
  .amdhsa_next_free_vgpr {vgpr}
  .amdhsa_next_free_sgpr {sgpr}
  .amdhsa_accum_offset {acc}
  .amdhsa_group_segment_fixed_size 0
  .amdhsa_kernarg_size 96
  .amdhsa_user_sgpr_count 2
  .amdhsa_user_sgpr_kernarg_segment_ptr 1
  .amdhsa_system_sgpr_workgroup_id_x 1
.end_amdhsa_kernel"""

def swap23(a, dst, src, t1, t2):
    a(f"""
  v_and_b32 v{t1}, 4, v{src}
  v_and_b32 v{t2}, 8, v{src}
  v_and_b32 v{dst}, 0xfffffff3, v{src}
  v_lshlrev_b32 v{t1}, 1, v{t1}
  v_lshrrev_b32 v{t2}, 1, v{t2}
  v_or3_b32 v{dst}, v{dst}, v{t1}, v{t2}
""")
```

```python
from common import *

STAGE = 49152
KVOFF = 3 * STAGE
LDS_K1 = KVOFF + 16384
ROWSTAT = 0
CSOFF = 2048

def gen_k1(name, opt):
    a = Asm()
    S = Alloc("s", 4, 100); V = Alloc("v", 1, 256)
    sW, sRb, sCb, sRh, sCg, sRot = [S.get() for _ in range(6)]
    sX = S.get(4, 4); sWa = S.get(4, 4); sWb = S.get(4, 4); sKV = S.get(4, 4); sWS = S.get(4, 4); sRL = S.get(4, 4)
    sP = S.get(24, 4)
    pX, pWQ, pWK, pWV, pWO, pBX, pWG, pWU, pWD, pOUT, pDBG, pWS = [sP + 2 * i for i in range(12)]
    sC, sOffX, sOffW, sStrW, sDma, sRd, sDelta, sT0, sT1, sT2, sT3, sT4, sT5 = [S.get() for _ in range(13)]
    sE = S.get(2, 2); sM1 = S.get(2, 2); sM2 = S.get(2, 2); sM3 = S.get(2, 2)
    sJobA, sJobB, sJob2A, sJob2B, sDst1, sDst2, sStage = [S.get() for _ in range(7)]

    vLane, vR16, vG, vT0, vT1, vT2, vT3 = [V.get() for _ in range(7)]
    vDX = [V.get() for _ in range(2)]; vDW = [V.get() for _ in range(4)]
    vXf, vXs, vS0, vS1, vWf, vWs, vQf, vQs = [V.get() for _ in range(8)]
    vKV = V.get()
    vOnes = V.get(4, 4)
    vSum = V.get(4, 4); vSq = V.get(4, 4); vKVa = V.get(4, 4); vKVc = V.get(4, 4)
    vCs = V.get(16, 4)
    acc = V.get(64, 4)
    setA = V.get(64, 4); setB = V.get(64, 4)
    def ACC(slot, rt): return acc + (slot * 4 + rt) * 4
    def FR(st, kind, i): return st + {"xf": 0, "xs": 16, "wf": 32, "ws": 48}[kind] + 4 * i

    entry(a, name)
    a("  s_load_dwordx8 s[%d:%d], s[0:1], 0\n  s_load_dwordx8 s[%d:%d], s[0:1], 32\n  s_load_dwordx8 s[%d:%d], s[0:1], 64" % (sP, sP+7, sP+8, sP+15, sP+16, sP+23))
    ids(a, name, sW, sRb, sCb, vLane, vT0)
    a(f"""
  v_and_b32 v{vR16}, 15, v{vLane}
  v_lshrrev_b32 v{vG}, 4, v{vLane}
  s_lshr_b32 s{sRh}, s{sW}, 2
  s_and_b32 s{sCg}, s{sW}, 3
  s_and_b32 s{sRot}, s{sCb}, 7
""")
    a(f"""
  s_add_u32 s{sT0}, s{sW}, s{sRot}
  s_and_b32 s{sT0}, s{sT0}, 7
  s_lshl_b32 s{sT0}, s{sT0}, 4
  s_lshl_b32 s{sT1}, s{sRb}, 7
  s_add_u32 s{sT0}, s{sT0}, s{sT1}
  s_lshl_b32 s{sT0}, s{sT0}, 10
  v_lshrrev_b32 v{vT0}, 3, v{vLane}
  v_and_b32 v{vT1}, 7, v{vLane}
""")
    for i in range(2):
        a(f"""
  v_add_u32 v{vT2}, {4*i}, v{vG}
  v_xor_b32 v{vT2}, v{vT2}, v{vT1}
  v_lshlrev_b32 v{vT2}, 4, v{vT2}
  v_add_u32 v{vT3}, {8*i}, v{vT0}
  v_lshl_add_u32 v{vT2}, v{vT3}, 10, v{vT2}
  v_add_u32 v{vDX[i]}, s{sT0}, v{vT2}
""")
    a(f"  s_cmp_eq_u32 s{sW}, 7\n  s_cbranch_scc1 {name}_dq")
    a(f"  s_mul_i32 s{sT1}, s{sCb}, 224\n  s_movk_i32 s{sT2}, 4682\n  s_movk_i32 s{sT3}, 3584")
    for i in range(4):
        a(f"""
  s_lshl_b32 s{sT0}, s{sW}, 2
  s_add_u32 s{sT0}, s{sT0}, {i}
  s_sub_u32 s{sT4}, s{sT0}, 14
  s_cmp_ge_u32 s{sT0}, 14
  s_cselect_b32 s{sT0}, s{sT4}, s{sT0}
  s_lshl_b32 s{sT0}, s{sT0}, 6
  v_add_u32 v{vT0}, s{sT0}, v{vLane}
  v_mul_lo_u32 v{vT1}, v{vT0}, s{sT2}
  v_lshrrev_b32 v{vT1}, 16, v{vT1}
  v_mul_u32_u24 v{vT2}, 14, v{vT1}
  v_sub_u32 v{vT0}, v{vT0}, v{vT2}
""")
        swap23(a, vT1, vT1, vT2, vT3)
        a(f"""
  v_mul_lo_u32 v{vT1}, v{vT1}, s{sT3}
  v_lshl_add_u32 v{vT0}, v{vT0}, 4, v{vT1}
  v_add_u32 v{vDW[i]}, s{sT1}, v{vT0}
""")
    a(f"  s_mov_b32 s{sStrW}, 229376\n  s_branch {name}_dq_done")
    a.label(f"{name}_dq")
    a(f"""
  v_bfe_u32 v{vT0}, v{vLane}, 1, 4
""")
    swap23(a, vT0, vT0, vT2, vT3)
    a(f"""
  v_lshlrev_b32 v{vT0}, 10, v{vT0}
  v_lshrrev_b32 v{vT1}, 5, v{vLane}
  v_lshl_add_u32 v{vT0}, v{vT1}, 5, v{vT0}
  v_and_b32 v{vT1}, 1, v{vLane}
  v_lshl_add_u32 v{vT0}, v{vT1}, 4, v{vT0}
  s_lshl_b32 s{sT1}, s{sCb}, 6
  v_add_u32 v{vT0}, s{sT1}, v{vT0}
""")
    for i in range(4):
        a(f"  v_add_u32 v{vDW[i]}, {i*16384}, v{vT0}")
    a(f"  s_mov_b32 s{sStrW}, 65536")
    a.label(f"{name}_dq_done")
    a("  s_waitcnt lgkmcnt(0)")
    srd(a, sX, pX, 2048 * 1024)
    srd(a, sWS, pWS, WS_SIZE)
    for dst, lim in ((sWa, 4), (sWb, 3)):
        a(f"""
  s_cmp_lt_u32 s{sW}, {lim}
  s_cselect_b32 s{dst}, s{pWG}, s{pWU}
  s_cselect_b32 s{dst+1}, s{pWG+1}, s{pWU+1}
  s_cmp_eq_u32 s{sW}, 7
  s_cselect_b32 s{dst}, s{pWQ}, s{dst}
  s_cselect_b32 s{dst+1}, s{pWQ+1}, s{dst+1}
  s_mov_b32 s{sT0}, {512*3584}
  s_cselect_b32 s{dst+2}, {512*1024}, s{sT0}
  s_mov_b32 s{dst+3}, {hex(SRD3)}
""")
    a(f"""
  s_cmp_lt_u32 s{sCb}, 8
  s_cselect_b32 s{sKV}, s{pWK}, s{pWV}
  s_cselect_b32 s{sKV+1}, s{pWK+1}, s{pWV+1}
  s_mov_b32 s{sKV+2}, 16384
  s_mov_b32 s{sKV+3}, {hex(SRD3)}
""")
    vGa = setB
    vGb = setB + 8
    vGoD, vGoO = setB + 16, setB + 17
    vRL1 = setB + 20; vRL2 = setB + 24
    a(f"""
  s_lshl_b32 s{sT0}, s{sRb}, 4
  s_add_u32 s{sT0}, s{sT0}, s{sCb}
  s_lshl_b32 s{sT0}, s{sT0}, 3
  s_add_u32 s{sT5}, s{sT0}, s{sW}
  v_lshrrev_b32 v{vT0}, 2, v{vR16}
  v_and_b32 v{vT1}, 3, v{vR16}
  v_lshl_add_u32 v{vT0}, v{vT0}, 3, v{vT1}
  v_lshlrev_b32 v{vT0}, 1, v{vT0}
  v_lshl_add_u32 v{vGoD}, v{vG}, 12, v{vT0}
  v_lshrrev_b32 v{vT1}, 1, v{vG}
  v_and_b32 v{vT2}, 1, v{vG}
  v_lshlrev_b32 v{vT1}, 14, v{vT1}
  v_lshl_add_u32 v{vT1}, v{vT2}, 12, v{vT1}
  v_add_u32 v{vGoO}, v{vT1}, v{vT0}
""")
    def job(tag, sF, tmp, sA, sB, sDst):
        a(f"""
  s_cmp_ge_u32 s{sF}, 1792
  s_cbranch_scc1 {name}_{tag}_wo
  s_mul_hi_u32 s{sT0}, s{sF}, {hex((2**32 + 55) // 56)}
  s_mul_i32 s{sT1}, s{sT0}, 56
  s_sub_u32 s{sT1}, s{sF}, s{sT1}
  s_lshl_b32 s{sDst}, s{sF}, 10
  s_add_u32 s{sDst}, s{sDst}, {WS_WDF}
  s_lshr_b32 s{sT2}, s{sT0}, 1
  s_lshl_b32 s{sT2}, s{sT2}, 6
  s_and_b32 s{sT0}, s{sT0}, 1
  s_lshl_b32 s{sT0}, s{sT0}, 3
  s_add_u32 s{sT2}, s{sT2}, s{sT0}
  s_cmp_ge_u32 s{sT1}, 48
  s_cbranch_scc1 {name}_{tag}_tail
  s_mul_hi_u32 s{sT0}, s{sT1}, {hex((2**32 + 2) // 3)}
  s_mul_i32 s{sT3}, s{sT0}, 3
  s_sub_u32 s{sT3}, s{sT1}, s{sT3}
  s_mul_i32 s{sT0}, s{sT0}, 112
  s_lshl_b32 s{sT3}, s{sT3}, 5
  s_add_u32 s{sT0}, s{sT0}, s{sT3}
  s_add_u32 s{sT3}, s{sT0}, 16
  s_branch {name}_{tag}_wd
{name}_{tag}_tail:
  s_sub_u32 s{sT0}, s{sT1}, 48
  s_mul_i32 s{sT0}, s{sT0}, 224
  s_add_u32 s{sT0}, s{sT0}, 96
  s_add_u32 s{sT3}, s{sT0}, 112
{name}_{tag}_wd:
  s_lshl_b32 s{sT0}, s{sT0}, 10
  s_lshl_b32 s{sT3}, s{sT3}, 10
  s_add_u32 s{sA}, s{sT0}, s{sT2}
  s_add_u32 s{sB}, s{sT3}, s{sT2}
  s_mov_b32 s{sRL}, s{pWD}
  s_mov_b32 s{sRL+1}, s{pWD+1}
  s_mov_b32 s{sRL+2}, {1792*1024}
  s_mov_b32 s{sRL+3}, {hex(SRD3)}
""")
        for j in range(8):
            a(f"  buffer_load_ushort v{tmp+j}, v{vGoD}, s[{sRL}:{sRL+3}], s{sA if j < 4 else sB} offen offset:{(j%4)*1024}")
        a(f"""
  s_branch {name}_{tag}_done
{name}_{tag}_wo:
  s_sub_u32 s{sT0}, s{sF}, 1792
  s_lshl_b32 s{sDst}, s{sT0}, 10
  s_add_u32 s{sDst}, s{sDst}, {WS_WOF}
  s_lshr_b32 s{sT1}, s{sT0}, 4
  s_and_b32 s{sT0}, s{sT0}, 15
  s_lshr_b32 s{sT2}, s{sT1}, 1
  s_lshl_b32 s{sT2}, s{sT2}, 6
  s_and_b32 s{sT1}, s{sT1}, 1
  s_lshl_b32 s{sT1}, s{sT1}, 3
  s_add_u32 s{sT2}, s{sT2}, s{sT1}
  s_lshl_b32 s{sT0}, s{sT0}, 15
  s_add_u32 s{sA}, s{sT0}, s{sT2}
  s_add_u32 s{sB}, s{sA}, 8192
  s_mov_b32 s{sRL}, s{pWO}
  s_mov_b32 s{sRL+1}, s{pWO+1}
  s_mov_b32 s{sRL+2}, {512*1024}
  s_mov_b32 s{sRL+3}, {hex(SRD3)}
""")
        for j in range(8):
            a(f"  buffer_load_ushort v{tmp+j}, v{vGoO}, s[{sRL}:{sRL+3}], s{sA if j < 4 else sB} offen offset:{(j%4)*1024}")
        a.label(f"{name}_{tag}_done")
    job("j1", sT5, vGa, sJobA, sJobB, sDst1)
    a(f"  s_cmp_ge_u32 s{sT5}, 256\n  s_cbranch_scc1 {name}_nojob2\n  s_add_u32 s{sT5}, s{sT5}, 2048")
    job("j2", sT5, vGb, sJob2A, sJob2B, sDst2)
    a(f"  s_branch {name}_job2_end")
    a.label(f"{name}_nojob2")
    a(f"  s_mov_b32 s{sDst2}, -1")
    a.label(f"{name}_job2_end")
    a(f"""
  v_lshrrev_b32 v{vT0}, 1, v{vLane}
  s_lshl_b32 s{sT0}, s{sW}, 6
  v_add_u32 v{vT0}, s{sT0}, v{vT0}
""")
    swap23(a, vT0, vT0, vT2, vT3)
    a(f"""
  v_and_b32 v{vT1}, 1, v{vLane}
  v_lshlrev_b32 v{vT0}, 5, v{vT0}
  v_lshl_add_u32 v{vT0}, v{vT1}, 4, v{vT0}
  s_lshl_b32 s{sT0}, s{sW}, 11
  s_add_u32 m0, s{sT0}, {KVOFF}
  v_add_u32 v{vT1}, 1024, v{vT0}
  buffer_load_dwordx4 v{vT0}, s[{sKV}:{sKV+3}], 0 offen lds
  s_add_u32 m0, s{sT0}, {KVOFF + 1024}
  s_mov_b32 s{sOffX}, 0
  buffer_load_dwordx4 v{vT1}, s[{sKV}:{sKV+3}], 0 offen lds
  s_mov_b32 s{sOffW}, 0
  s_mov_b32 s{sDma}, 0
""")
    def dma():
        a(f"""
  s_lshl_b32 s{sT0}, s{sW}, 11
  s_add_u32 s{sT0}, s{sT0}, s{sDma}
  s_mov_b32 m0, s{sT0}
  s_lshl_b32 s{sT1}, s{sW}, 12
  buffer_load_dwordx4 v{vDX[0]}, s[{sX}:{sX+3}], s{sOffX} offen lds
  s_add_u32 m0, s{sT0}, 1024
  s_add_u32 s{sT1}, s{sT1}, s{sDma}
  buffer_load_dwordx4 v{vDX[1]}, s[{sX}:{sX+3}], s{sOffX} offen lds
""")
        for i in range(4):
            r = sWa if i < 2 else sWb
            a(f"""
  s_add_u32 m0, s{sT1}, {16384 + i*1024}
  s_nop 0
  buffer_load_dwordx4 v{vDW[i]}, s[{r}:{r+3}], s{sOffW} offen lds
""")
        a(f"""
  s_add_u32 s{sOffX}, s{sOffX}, 128
  s_add_u32 s{sOffW}, s{sOffW}, s{sStrW}
  s_add_u32 s{sDma}, s{sDma}, {STAGE}
  s_cmp_eq_u32 s{sDma}, {3*STAGE}
  s_cselect_b32 s{sDma}, 0, s{sDma}
""")
    for c in range(3): dma()
    a(f"""
  v_lshrrev_b32 v{vT0}, 1, v{vR16}
  v_xor_b32 v{vT1}, v{vG}, v{vT0}
  v_xor_b32 v{vT2}, 4, v{vT1}
  v_lshlrev_b32 v{vT3}, 7, v{vR16}
  v_lshl_add_u32 v{vT1}, v{vT1}, 4, v{vT3}
  v_lshl_add_u32 v{vT2}, v{vT2}, 4, v{vT3}
  s_lshl_b32 s{sT0}, s{sW}, 11
  v_add_u32 v{vS0}, s{sT0}, v{vT1}
  v_add_u32 v{vS1}, s{sT0}, v{vT2}
  s_lshl_b32 s{sT0}, s{sRh}, 13
  s_cmp_eq_u32 s{sRh}, 0
  s_cselect_b64 vcc, -1, 0
  v_add_u32 v{vT1}, s{sT0}, v{vT1}
  v_add_u32 v{vT2}, s{sT0}, v{vT2}
  v_cndmask_b32 v{vXf}, v{vT2}, v{vT1}, vcc
  v_cndmask_b32 v{vXs}, v{vT1}, v{vT2}, vcc
  v_lshrrev_b32 v{vT0}, 2, v{vR16}
  v_and_b32 v{vT1}, 1, v{vG}
  v_lshl_add_u32 v{vT0}, v{vT1}, 2, v{vT0}
  v_lshrrev_b32 v{vT1}, 1, v{vG}
  v_and_b32 v{vT2}, 3, v{vLane}
  v_lshlrev_b32 v{vT2}, 3, v{vT2}
  v_lshl_add_u32 v{vT3}, v{vT1}, 4, v{vT0}
  v_lshl_add_u32 v{vKV}, v{vT3}, 5, v{vT2}
  v_add_u32 v{vKV}, {KVOFF}, v{vKV}
  v_mul_u32_u24 v{vT3}, 224, v{vT3}
  v_add_u32 v{vT3}, v{vT3}, v{vT2}
  s_lshl_b32 s{sT0}, s{sCg}, 6
  s_add_u32 s{sT0}, s{sT0}, 16384
  s_mul_i32 s{sT1}, s{sRh}, 7168
  s_add_u32 s{sT2}, s{sT0}, s{sT1}
  s_add_u32 s{sT0}, s{sT0}, 7168
  s_sub_u32 s{sT0}, s{sT0}, s{sT1}
  v_add_u32 v{vWf}, s{sT2}, v{vT3}
  v_add_u32 v{vWs}, s{sT0}, v{vT3}
  v_lshlrev_b32 v{vT1}, 10, v{vT1}
  v_lshl_add_u32 v{vT1}, v{vT0}, 5, v{vT1}
  v_add_u32 v{vT1}, v{vT1}, v{vT2}
  s_lshl_b32 s{sT1}, s{sRh}, 11
  s_add_u32 s{sT2}, s{sT1}, {16384 + 28672}
  s_sub_u32 s{sT0}, {16384 + 28672 + 2048}, s{sT1}
  v_add_u32 v{vQf}, s{sT2}, v{vT1}
  v_add_u32 v{vQs}, s{sT0}, v{vT1}
""")
    for i in range(4): a(f"  v_mov_b32 v{vOnes+i}, 0x3f803f80")
    for r in list(range(vSum, vSum+4)) + list(range(vSq, vSq+4)) + list(range(vKVa, vKVa+4)) + list(range(vKVc, vKVc+4)) + list(range(vCs, vCs+16)) + list(range(acc, acc+64)):
        a(f"  v_mov_b32 v{r}, 0")
    a(f"""
  s_cmp_eq_u32 s{sW}, 0
  s_cselect_b64 vcc, -1, 0
  s_mov_b32 s{sC}, 0
  s_mov_b32 s{sStage}, {STAGE}
  s_mov_b32 s{sRd}, 0
  s_mov_b32 s{sT0}, 0x5040100
  s_waitcnt vmcnt(12)
""")
    ST = opt.get("store", "sc1")
    a(f"  v_lshlrev_b32 v{vT0}, 4, v{vLane}")
    for j in range(4):
        a(f"  v_perm_b32 v{vRL1+j}, v{vGa+2*j+1}, v{vGa+2*j}, s{sT0}")
    a(f"  buffer_store_dwordx4 v[{vRL1}:{vRL1+3}], v{vT0}, s[{sWS}:{sWS+3}], s{sDst1} offen {ST}")
    a(f"  s_cmp_eq_u32 s{sDst2}, -1\n  s_cbranch_scc1 {name}_nopack2")
    for j in range(4):
        a(f"  v_perm_b32 v{vRL2+j}, v{vGb+2*j+1}, v{vGb+2*j}, s{sT0}")
    a(f"  buffer_store_dwordx4 v[{vRL2}:{vRL2+3}], v{vT0}, s[{sWS}:{sWS+3}], s{sDst2} offen {ST}")
    a.label(f"{name}_nopack2")
    a("  s_barrier")

    def reads(st, variant):
        L = []
        for rt in range(4): L.append(f"  ds_read_b128 v[{FR(st,'xf',rt)}:{FR(st,'xf',rt)+3}], v{vXf} offset:{rt*2048}")
        for rt in range(4): L.append(f"  ds_read_b128 v[{FR(st,'xs',rt)}:{FR(st,'xs',rt)+3}], v{vXs} offset:{rt*2048}")
        for kind, vw, vq in (("wf", vWf, vQf), ("ws", vWs, vQs)):
            for slot in range(4):
                for jh in range(2):
                    r = FR(st, kind, slot) + 2 * jh
                    if variant == "B" and slot >= 2:
                        L.append(f"  ds_read_b64_tr_b16 v[{r}:{r+1}], v{vq} offset:{(slot-2)*512 + jh*256}")
                    else:
                        if variant == "A": off = (slot % 2) * 14336 + (slot // 2) * 32
                        else: off = slot * 14336
                        L.append(f"  ds_read_b64_tr_b16 v[{r}:{r+1}], v{vw} offset:{off + jh*1792}")
        return L
    def side_reads(t):
        return [f"  ds_read_b128 v[{t}:{t+3}], v{vS0}", f"  ds_read_b128 v[{t+4}:{t+7}], v{vS1}"]
    def kv_reads(t):
        return [f"  ds_read_b64_tr_b16 v[{t+4*ks+2*jh}:{t+4*ks+2*jh+1}], v{vKV} offset:{ks*1024 + jh*256}" for ks in range(2) for jh in range(2)]
    def mf(d, A, B): return f"  v_mfma_f32_16x16x32_bf16 v[{d}:{d+3}], v[{A}:{A+3}], v[{B}:{B+3}], v[{d}:{d+3}]"
    def stats_mfma(t):
        a(mf(vSum, vOnes, t)); a(mf(vSq, t, t)); a(mf(vSum, vOnes, t + 4)); a(mf(vSq, t + 4, t + 4))

    def body(variant, st, nst, tag):
        a(f"""
  s_cmp_ge_u32 s{sC}, 6
  s_cbranch_scc1 {name}_{tag}_w0
  s_waitcnt vmcnt(6) lgkmcnt(0)
  s_branch {name}_{tag}_w1
{name}_{tag}_w0:
  s_waitcnt vmcnt(0) lgkmcnt(0)
{name}_{tag}_w1:
  s_barrier
  s_cmp_ge_u32 s{sC}, 5
  s_cbranch_scc1 {name}_{tag}_nodma
""")
        dma()
        a.label(f"{name}_{tag}_nodma")
        addr = [vS0, vS1, vXf, vXs, vWf, vWs] + ([vQf, vQs] if variant == "B" else [])
        a(f"""
  s_add_u32 s{sRd}, s{sRd}, {STAGE}
  s_cmp_eq_u32 s{sRd}, {3*STAGE}
  s_cselect_b32 s{sRd}, 0, s{sRd}
  s_cselect_b32 s{sDelta}, {hex((-2*STAGE) & 0xffffffff)}, s{sStage}
""")
        for v in addr: a(f"  v_add_u32 v{v}, s{sDelta}, v{v}")
        tS = FR(nst, "ws", 0); tK = FR(nst, "ws", 2)
        for r in side_reads(tS): a(r)
        if variant == "A":
            a(f"  s_cbranch_vccz {name}_{tag}_nokv")
            for r in kv_reads(tK): a(r)
            a(f"  s_cmp_lt_u32 s{sC}, 7\n  s_cselect_b32 s{sT0}, 2048, 0\n  v_add_u32 v{vKV}, s{sT0}, v{vKV}")
            a.label(f"{name}_{tag}_nokv")
        rd = reads(nst, variant)
        rd1, rd2 = rd[:16], rd[16:]
        mm = []
        for slot in range(4):
            for rt in range(4):
                mm.append(mf(ACC(slot, rt), FR(st, "wf", slot), FR(st, "xf", rt)))
                mm.append(mf(ACC(slot, rt), FR(st, "ws", slot), FR(st, "xs", rt)))
            mm.append(mf(vCs + 4 * slot, FR(st, "wf", slot), vOnes))
        for i in range(12):
            a(mm[i]); a(rd1[i])
        a("  s_waitcnt lgkmcnt(12)")
        a(f"  s_cmp_ge_u32 s{sC}, 7\n  s_cbranch_scc1 {name}_{tag}_nost")
        stats_mfma(tS)
        a.label(f"{name}_{tag}_nost")
        if variant == "A":
            a(f"  s_cbranch_vccz {name}_{tag}_nokv2")
            a(mf(vKVa, tK, FR(st, "xf", 0))); a(mf(vKVc, tK, vOnes))
            a(mf(vKVa, tK + 4, FR(st, "xs", 0))); a(mf(vKVc, tK + 4, vOnes))
            a.label(f"{name}_{tag}_nokv2")
        rest = rd1[12:] + rd2
        k = 0
        for i in range(12, len(mm)):
            a(mm[i])
            if k < len(rest): a(rest[k]); k += 1
        assert k == len(rest)
        a(f"  s_add_u32 s{sC}, s{sC}, 1")

    for variant in ("A", "B"):
        if variant == "A":
            a(f"  s_cmp_eq_u32 s{sCg}, 3\n  s_cbranch_scc1 {name}_mainB")
        else:
            a.label(f"{name}_mainB")
        for r in side_reads(setB): a(r)
        for r in reads(setA, variant): a(r)
        a("  s_waitcnt lgkmcnt(15)")
        a("  s_waitcnt lgkmcnt(0)")
        stats_mfma(setB)
        a(".p2align 3")
        a.label(f"{name}_loop{variant}")
        body(variant, setA, setB, f"{variant}0")
        body(variant, setB, setA, f"{variant}1")
        a(f"  s_cmp_lt_u32 s{sC}, 8\n  s_cbranch_scc1 {name}_loop{variant}")
        if variant == "A": a(f"  s_branch {name}_epi")
    a.label(f"{name}_epi")
    t0, t1, t2, t3 = setA, setA + 1, setA + 2, setA + 3
    ent = setA + 4
    a(f"""
  s_waitcnt lgkmcnt(0)
  v_and_b32 v{t0}, 3, v{vLane}
  v_cmp_eq_u32 s[{sM1}:{sM1+1}], 1, v{t0}
  v_cmp_eq_u32 s[{sM2}:{sM2+1}], 2, v{t0}
  v_cmp_eq_u32 s[{sM3}:{sM3+1}], 3, v{t0}
  v_lshrrev_b32 v{t1}, 2, v{vR16}
  v_cmp_eq_u32 s[{sE}:{sE+1}], v{t1}, v{vG}
  s_nop 7
  v_cndmask_b32 v{t0}, v{vSq}, v{vSq+1}, s[{sM1}:{sM1+1}]
  v_cndmask_b32 v{t0}, v{t0}, v{vSq+2}, s[{sM2}:{sM2+1}]
  v_cndmask_b32 v{t0}, v{t0}, v{vSq+3}, s[{sM3}:{sM3+1}]
  v_mul_f32 v{ent}, {hex(f2u(-1.0/512))}, v{vSum}
  v_mul_f32 v{t0}, {hex(f2u(1.0/512))}, v{t0}
  v_fma_f32 v{t0}, -v{ent}, v{ent}, v{t0}
  v_max_f32 v{t0}, 0, v{t0}
  v_add_f32 v{ent+2}, {hex(f2u(1e-5))}, v{t0}
  v_rsq_f32 v{ent+1}, v{ent+2}
  v_mov_b32 v{ent+3}, 0
  s_lshl_b32 s{sT0}, s{sW}, 8
  v_lshlrev_b32 v{t1}, 4, v{vR16}
  v_add_u32 v{t1}, s{sT0}, v{t1}
  s_mov_b64 exec, s[{sE}:{sE+1}]
  ds_write_b128 v{t1}, v[{ent}:{ent+3}] offset:{ROWSTAT}
  s_mov_b64 exec, -1
  v_lshlrev_b32 v{t2}, 4, v{vG}
  s_lshl_b32 s{sT0}, s{sW}, 8
  v_add_u32 v{t2}, s{sT0}, v{t2}
  s_mov_b32 s{sE}, 0x00010001
  s_mov_b32 s{sE+1}, 0x00010001
  s_mov_b64 exec, s[{sE}:{sE+1}]
""")
    for slot in range(4):
        a(f"  ds_write_b128 v{t2}, v[{vCs+4*slot}:{vCs+4*slot+3}] offset:{CSOFF + slot*64}")
    a(f"""
  s_mov_b64 exec, -1
  s_waitcnt lgkmcnt(0)
  s_barrier
""")
    rs = setA + 8
    cs = setA + 24
    cs2 = setA + 40
    a(f"""
  s_lshl_b32 s{sT0}, s{sRh}, 10
  v_lshlrev_b32 v{t1}, 4, v{vR16}
  v_add_u32 v{t1}, s{sT0}, v{t1}
  s_lshl_b32 s{sT0}, s{sCg}, 8
  v_lshlrev_b32 v{t2}, 4, v{vG}
  v_add_u32 v{t2}, s{sT0}, v{t2}
""")
    for rt in range(4): a(f"  ds_read_b128 v[{rs+4*rt}:{rs+4*rt+3}], v{t1} offset:{ROWSTAT + rt*256}")
    for slot in range(4):
        a(f"  ds_read_b128 v[{cs+4*slot}:{cs+4*slot+3}], v{t2} offset:{CSOFF + slot*64}")
        a(f"  ds_read_b128 v[{cs2+4*slot}:{cs2+4*slot+3}], v{t2} offset:{CSOFF + 1024 + slot*64}")
    sRt = [sJobA, sJobB, sJob2A, sJob2B]
    for rt in range(4):
        a(f"""
  s_lshl_b32 s{sT0}, s{sRh}, 2
  s_add_u32 s{sT0}, s{sT0}, s{sRot}
  s_add_u32 s{sT0}, s{sT0}, {rt}
  s_and_b32 s{sT0}, s{sT0}, 7
  s_lshl_b32 s{sT1}, s{sRb}, 3
  s_add_u32 s{sRt[rt]}, s{sT0}, s{sT1}
""")
    a("  s_waitcnt lgkmcnt(0)")
    for i in range(0, 16, 2):
        a(f"  v_pk_add_f32 v[{cs+i}:{cs+i+1}], v[{cs+i}:{cs+i+1}], v[{cs2+i}:{cs2+i+1}]")
    vL16 = setB; tg = setB + 4; tu = setB + 8; z = setB + 12; pk = setB + 16; na = setB + 24
    a(f"  v_lshlrev_b32 v{vL16}, 4, v{vLane}")
    for rt in range(4):
        a(f"  v_mul_f32 v{na+rt}, {hex(f2u(-LOG2E))}, v{rs+4*rt+1}")
    def swiglu(slot_g, slot_u, rt, out):
        st = rs + 4 * rt
        ag, au = ACC(slot_g, rt), ACC(slot_u, rt)
        for i in (0, 2):
            a(f"  v_pk_fma_f32 v[{tg+i}:{tg+i+1}], v[{st}:{st+1}], v[{cs+4*slot_g+i}:{cs+4*slot_g+i+1}], v[{ag+i}:{ag+i+1}] op_sel_hi:[0,1,1]")
        for i in (0, 2):
            a(f"  v_pk_fma_f32 v[{tu+i}:{tu+i+1}], v[{st}:{st+1}], v[{cs+4*slot_u+i}:{cs+4*slot_u+i+1}], v[{au+i}:{au+i+1}] op_sel_hi:[0,1,1]")
        for i in range(4): a(f"  v_mul_f32 v{z+i}, v{na+rt}, v{tg+i}")
        for i in range(4): a(f"  v_exp_f32 v{z+i}, v{z+i}")
        for i in (0, 2): a(f"  v_pk_mul_f32 v[{tg+i}:{tg+i+1}], v[{tg+i}:{tg+i+1}], v[{tu+i}:{tu+i+1}]")
        for i in range(4): a(f"  v_fma_f32 v{z+i}, v{z+i}, v{st+2}, v{st+2}")
        for i in range(4): a(f"  v_rcp_f32 v{z+i}, v{z+i}")
        a("  s_nop 0")
        for i in (0, 2): a(f"  v_pk_mul_f32 v[{tg+i}:{tg+i+1}], v[{tg+i}:{tg+i+1}], v[{z+i}:{z+i+1}]")
        a(f"  v_cvt_pk_bf16_f32 v{out}, v{tg}, v{tg+1}\n  v_cvt_pk_bf16_f32 v{out+1}, v{tg+2}, v{tg+3}")
    a(f"  s_cmp_eq_u32 s{sCg}, 3\n  s_cbranch_scc1 {name}_epiB")
    a(f"  s_mul_i32 s{sT2}, s{sCb}, 3\n  s_add_u32 s{sT2}, s{sT2}, s{sCg}")
    for rt in range(4):
        o = pk + 4 * (rt % 2)
        swiglu(0, 1, rt, o); swiglu(2, 3, rt, o + 2)
        a(f"""
  s_mul_i32 s{sT0}, s{sRt[rt]}, 56
  s_add_u32 s{sT0}, s{sT0}, s{sT2}
  s_lshl_b32 s{sT0}, s{sT0}, 10
  s_add_u32 s{sT0}, s{sT0}, {WS_HF}
  buffer_store_dwordx4 v[{o}:{o+3}], v{vL16}, s[{sWS}:{sWS+3}], s{sT0} offen {ST}
""")
    a(f"  s_cbranch_vccz {name}_fin")
    for i in (0, 2):
        a(f"  v_pk_fma_f32 v[{tg+i}:{tg+i+1}], v[{rs}:{rs+1}], v[{vKVc+i}:{vKVc+i+1}], v[{vKVa+i}:{vKVa+i+1}] op_sel_hi:[0,1,1]")
    for i in range(4): a(f"  v_mul_f32 v{tg+i}, v{rs+1}, v{tg+i}")
    a(f"""
  v_cvt_pk_bf16_f32 v{tu}, v{tg}, v{tg+1}
  v_cvt_pk_bf16_f32 v{tu+1}, v{tg+2}, v{tg+3}
  s_cmp_ge_u32 s{sCb}, 8
  s_cbranch_scc1 {name}_vst
  v_lshrrev_b32 v{t0}, 1, v{vG}
  v_lshlrev_b32 v{t0}, 9, v{t0}
  v_lshl_add_u32 v{t0}, v{vR16}, 4, v{t0}
  v_and_b32 v{t1}, 1, v{vG}
  v_lshl_add_u32 v{t0}, v{t1}, 3, v{t0}
  s_lshr_b32 s{sT0}, s{sRt[0]}, 1
  s_lshl_b32 s{sT0}, s{sT0}, 10
  s_and_b32 s{sT1}, s{sRt[0]}, 1
  s_lshl_b32 s{sT1}, s{sT1}, 8
  s_add_u32 s{sT0}, s{sT0}, s{sT1}
  s_add_u32 s{sT0}, s{sT0}, {WS_KF}
  buffer_store_dwordx2 v[{tu}:{tu+1}], v{t0}, s[{sWS}:{sWS+3}], s{sT0} offen {ST}
  s_branch {name}_fin
{name}_vst:
  v_lshrrev_b32 v{t0}, 3, v{vR16}
  v_lshlrev_b32 v{t0}, 8, v{t0}
  v_lshl_add_u32 v{t0}, v{vG}, 6, v{t0}
  v_and_b32 v{t1}, 7, v{vR16}
  v_lshl_add_u32 v{t0}, v{t1}, 1, v{t0}
  s_lshl_b32 s{sT0}, s{sRt[0]}, 9
  s_add_u32 s{sT0}, s{sT0}, {WS_VF}
  buffer_store_short v{tu}, v{t0}, s[{sWS}:{sWS+3}], s{sT0} offen {ST}
  buffer_store_short_d16_hi v{tu}, v{t0}, s[{sWS}:{sWS+3}], s{sT0} offen offset:16 {ST}
  buffer_store_short v{tu+1}, v{t0}, s[{sWS}:{sWS+3}], s{sT0} offen offset:32 {ST}
  buffer_store_short_d16_hi v{tu+1}, v{t0}, s[{sWS}:{sWS+3}], s{sT0} offen offset:48 {ST}
  s_branch {name}_fin
""")
    a.label(f"{name}_epiB")
    a(f"""
  s_and_b32 s{sT2}, s{sCb}, 1
  s_lshl_b32 s{sT2}, s{sT2}, 3
  v_add_u32 v{vL16+1}, s{sT2}, v{vL16}
  s_lshr_b32 s{sT2}, s{sCb}, 1
  s_add_u32 s{sT2}, s{sT2}, 48
  v_lshrrev_b32 v{t0}, 1, v{vG}
  v_lshlrev_b32 v{t0}, 9, v{t0}
  v_lshl_add_u32 v{t0}, v{vR16}, 4, v{t0}
  v_and_b32 v{t1}, 1, v{vG}
  v_lshl_add_u32 v{vL16+2}, v{t1}, 3, v{t0}
""")
    QS = 0.25 * LOG2E
    for rt in range(4):
        o = pk + 4 * (rt % 2)
        swiglu(0, 1, rt, o)
        a(f"""
  s_mul_i32 s{sT0}, s{sRt[rt]}, 56
  s_add_u32 s{sT0}, s{sT0}, s{sT2}
  s_lshl_b32 s{sT0}, s{sT0}, 10
  s_add_u32 s{sT0}, s{sT0}, {WS_HF}
  buffer_store_dwordx2 v[{o}:{o+1}], v{vL16+1}, s[{sWS}:{sWS+3}], s{sT0} offen {ST}
  v_mul_f32 v{z}, {hex(f2u(QS))}, v{rs+4*rt+1}
  s_lshr_b32 s{sT0}, s{sRt[rt]}, 1
  s_lshl_b32 s{sT0}, s{sT0}, 5
  s_lshl_b32 s{sT1}, s{sCb}, 1
  s_add_u32 s{sT0}, s{sT0}, s{sT1}
  s_lshl_b32 s{sT0}, s{sT0}, 10
  s_and_b32 s{sT1}, s{sRt[rt]}, 1
  s_lshl_b32 s{sT1}, s{sT1}, 8
  s_add_u32 s{sT0}, s{sT0}, s{sT1}
  s_add_u32 s{sT0}, s{sT0}, {WS_QF}
""")
        for hh in range(2):
            slot = 2 + hh; aq = ACC(slot, rt); st = rs + 4 * rt; q = o + 2 if hh == 0 else tu + 2 * (rt % 2)
            for i in (0, 2):
                a(f"  v_pk_fma_f32 v[{tg+i}:{tg+i+1}], v[{st}:{st+1}], v[{cs+4*slot+i}:{cs+4*slot+i+1}], v[{aq+i}:{aq+i+1}] op_sel_hi:[0,1,1]")
            for i in (0, 2):
                a(f"  v_pk_mul_f32 v[{tg+i}:{tg+i+1}], v[{tg+i}:{tg+i+1}], v[{z}:{z+1}] op_sel_hi:[1,0]")
            a(f"  v_cvt_pk_bf16_f32 v{q}, v{tg}, v{tg+1}\n  v_cvt_pk_bf16_f32 v{q+1}, v{tg+2}, v{tg+3}")
            a(f"  buffer_store_dwordx2 v[{q}:{q+1}], v{vL16+2}, s[{sWS}:{sWS+3}], s{sT0} offen offset:{hh*1024} {ST}")
    a.label(f"{name}_fin")
    a.label(f"{name}_exit")
    a("  s_endpgm")
    return a, V.hi, S.hi, LDS_K1
```

```python
from common import *

LDS_K2 = 163840
XCH = 131072
FLAG = XCH + 8 * 3072
RED = 0

def gemm_reduce(a, name, acc, vL16, vT, sCh, sKq, sT0, sT1, tmp):
    for s in range(1, 4):
        a(f"""
  s_add_u32 s{sT0}, s{sKq}, {s}
  s_and_b32 s{sT0}, s{sT0}, 3
  s_lshl_b32 s{sT1}, s{sCh}, 2
  s_add_u32 s{sT0}, s{sT0}, s{sT1}
  s_mul_i32 s{sT0}, s{sT0}, 6144
  s_add_u32 s{sT0}, s{sT0}, {RED + (s-1)*2048}
  v_add_u32 v{vT}, s{sT0}, v{vL16}
""")
        for ct in range(2):
            r = acc + (ct * 4 + s) * 4
            a(f"  ds_write_b128 v{vT}, v[{r}:{r+3}] offset:{ct*1024}")
    a(f"""
  s_lshl_b32 s{sT1}, s{sCh}, 2
  s_add_u32 s{sT0}, s{sKq}, s{sT1}
  s_mul_i32 s{sT0}, s{sT0}, 6144
  v_add_u32 v{vT}, s{sT0}, v{vL16}
  s_waitcnt lgkmcnt(0)
  s_barrier
""")
    for s in range(3):
        for ct in range(2):
            r = tmp + (s * 2 + ct) * 4
            a(f"  ds_read_b128 v[{r}:{r+3}], v{vT} offset:{RED + s*2048 + ct*1024}")
    a("  s_waitcnt lgkmcnt(0)")
    for s in range(3):
        for ct in range(2):
            r = tmp + (s * 2 + ct) * 4; d = acc + ct * 16
            for i in (0, 2):
                a(f"  v_pk_add_f32 v[{d+i}:{d+i+1}], v[{d+i}:{d+i+1}], v[{r+i}:{r+i+1}]")

def gen_k2(name, opt):
    a = Asm()
    S = Alloc("s", 4, 100); V = Alloc("v", 1, 256)
    sW, sRb, sCb, sP4, sKh, sCh, sKq, sPb, sJ = [S.get() for _ in range(9)]
    sWS = S.get(4, 4)
    pWS = S.get(2, 2)
    sH = [S.get() for _ in range(4)]; sD = [S.get() for _ in range(2)]
    sT0, sT1, sT2, sT3, sIt = [S.get() for _ in range(5)]
    sVm = S.get(2, 2); sE = S.get(2, 2)
    vLane, vL16, vT0, vT1, vKa, vVa, vGo, vIdx = [V.get() for _ in range(8)]
    vT2 = V.get(2, 2)
    Qa = V.get(4, 4); Qb = V.get(4, 4); K = V.get(4, 4); V1 = V.get(4, 4); V2 = V.get(4, 4)
    Sa = V.get(16, 4); Sb = V.get(16, 4); Oa = V.get(16, 4); Ob = V.get(16, 4)
    G = V.get(32, 4)
    F0 = V.get(24, 4); F1 = V.get(24, 4)
    Cm = V.get(16, 4)
    ST = opt.get("store", "sc1")

    entry(a, name)
    a(f"  s_load_dwordx2 s[{pWS}:{pWS+1}], s[0:1], 88")
    ids(a, name, sW, sRb, sCb, vLane, vT0)
    a(f"""
  v_lshlrev_b32 v{vL16}, 4, v{vLane}
  s_and_b32 s{sP4}, s{sW}, 3
  s_lshr_b32 s{sKh}, s{sW}, 2
  s_and_b32 s{sCh}, s{sW}, 1
  s_lshr_b32 s{sKq}, s{sW}, 1
  s_lshl_b32 s{sPb}, s{sRb}, 1
  s_lshr_b32 s{sT0}, s{sCb}, 3
  s_add_u32 s{sPb}, s{sPb}, s{sT0}
  s_and_b32 s{sJ}, s{sCb}, 7
  s_waitcnt lgkmcnt(0)
""")
    srd(a, sWS, pWS, WS_SIZE)
    a(f"""
  s_lshl_b32 s{sT0}, s{sRb}, 2
  s_add_u32 s{sT0}, s{sT0}, s{sP4}
  s_lshl_b32 s{sT0}, s{sT0}, 5
  s_lshl_b32 s{sT1}, s{sCb}, 1
  s_add_u32 s{sT0}, s{sT0}, s{sT1}
  s_add_u32 s{sT1}, s{sT0}, s{sKh}
  s_xor_b32 s{sT2}, s{sKh}, 1
  s_add_u32 s{sT0}, s{sT0}, s{sT2}
  s_lshl_b32 s{sT1}, s{sT1}, 10
  s_lshl_b32 s{sT0}, s{sT0}, 10
  buffer_load_dwordx4 v[{Qa}:{Qa+3}], v{vL16}, s[{sWS}:{sWS+3}], s{sT1} offen
  buffer_load_dwordx4 v[{Qb}:{Qb+3}], v{vL16}, s[{sWS}:{sWS+3}], s{sT0} offen
""")
    a(f"  s_lshl_b32 s{sT0}, s{sW}, 10\n  s_add_u32 s{sT1}, s{sT0}, {WS_KF}")
    for i in range(16):
        a(f"  s_add_u32 m0, s{sT0}, {i*8192}\n  s_add_u32 s{sT2}, s{sT1}, {i*8192}\n  buffer_load_dwordx4 v{vL16}, s[{sWS}:{sWS+3}], s{sT2} offen lds")
    for s in range(4):
        a(f"""
  s_add_u32 s{sT0}, s{sKq}, {s}
  s_and_b32 s{sT0}, s{sT0}, 3
  s_lshl_b32 s{sT1}, s{sPb}, 2
  s_add_u32 s{sT0}, s{sT0}, s{sT1}
  s_mul_i32 s{sT0}, s{sT0}, 56
  s_mul_i32 s{sT1}, s{sKq}, 14
  s_add_u32 s{sT0}, s{sT0}, s{sT1}
  s_lshl_b32 s{sT0}, s{sT0}, 10
  s_add_u32 s{sH[s]}, s{sT0}, {WS_HF}
""")
    for ct in range(2):
        a(f"""
  s_lshl_b32 s{sT0}, s{sJ}, 2
  s_lshl_b32 s{sT1}, s{sCh}, 1
  s_add_u32 s{sT0}, s{sT0}, s{sT1}
  s_add_u32 s{sT0}, s{sT0}, {ct}
  s_mul_i32 s{sT0}, s{sT0}, 56
  s_mul_i32 s{sT1}, s{sKq}, 14
  s_add_u32 s{sT0}, s{sT0}, s{sT1}
  s_lshl_b32 s{sT0}, s{sT0}, 10
  s_add_u32 s{sD[ct]}, s{sT0}, {WS_WDF}
""")
    def gloads(F):
        L = []
        for ct in range(2): L.append(f"  buffer_load_dwordx4 v[{F+4*ct}:{F+4*ct+3}], v{vGo}, s[{sWS}:{sWS+3}], s{sD[ct]} offen")
        for s in range(4): L.append(f"  buffer_load_dwordx4 v[{F+8+4*s}:{F+8+4*s+3}], v{vGo}, s[{sWS}:{sWS+3}], s{sH[s]} offen")
        L.append(f"  v_add_u32 v{vGo}, 1024, v{vGo}")
        return L
    a(f"  v_mov_b32 v{vGo}, v{vL16}")
    for l in gloads(F0): a(l)
    a(f"""
  s_lshl_b32 s{sT0}, s{sKh}, 15
  v_add_u32 v{vKa}, s{sT0}, v{vL16}
  v_and_b32 v{vT0}, 15, v{vLane}
  v_lshlrev_b32 v{vT0}, 4, v{vT0}
  v_lshrrev_b32 v{vT1}, 5, v{vLane}
  v_lshl_add_u32 v{vT0}, v{vT1}, 8, v{vT0}
  s_add_u32 s{sT0}, s{sT0}, 65536
  v_add_u32 v{vVa}, s{sT0}, v{vT0}
  v_mov_b32 v{vIdx}, 0xdddddddd
  s_mov_b32 s{sVm}, 0x0000ffff
  s_mov_b32 s{sVm+1}, 0x0000ffff
  v_and_b32 v{vT0}, 31, v{vLane}
  v_cmp_eq_u32 vcc, 16, v{vT0}
  v_cmp_eq_u32 s[{sE}:{sE+1}], 20, v{vT0}
  v_mov_b32 v{vT1}, 0x3f803f80
  v_mov_b32 v{vT2}, {FLAG}
  v_mov_b32 v{vT0}, 0
  s_nop 1
  s_or_b64 vcc, vcc, s[{sE}:{sE+1}]
  ds_write_b32 v{vT2}, v{vT0}
  v_cndmask_b32 v{vT0}, 0, v{vT1}, vcc
""")
    for r in range(4): a(f"  v_mov_b32 v{V1+r}, v{vT0}\n  v_mov_b32 v{V2+r}, v{vT0}")
    for r in list(range(Oa, Oa+16)) + list(range(Ob, Ob+16)) + list(range(Sb, Sb+16)) + list(range(G, G+32)):
        a(f"  v_mov_b32 v{r}, 0")
    a(f"""
  s_cmp_eq_u32 s{sKh}, 0
  s_cselect_b64 vcc, -1, 0
  s_waitcnt vmcnt(6) lgkmcnt(0)
  s_barrier
""")
    def vread(reg, off):
        return f"  s_mov_b64 exec, s[{sVm}:{sVm+1}]\n  ds_read_b128 v[{reg}:{reg+3}], v{vVa} offset:{off}\n  s_mov_b64 exec, -1"
    def smf(O, A, B): return f"  v_smfmac_f32_32x32x32_bf16 v[{O}:{O+15}], v[{A}:{A+3}], v[{B}:{B+7}], v{vIdx}"
    def qk(Sd, Q, C="0"): return f"  v_mfma_f32_32x32x16_bf16 v[{Sd}:{Sd+15}], v[{K}:{K+3}], v[{Q}:{Q+3}], {C}"
    def gm(ct, s, F):
        d = G + (ct * 4 + s) * 4
        return f"  v_mfma_f32_16x16x32_bf16 v[{d}:{d+3}], v[{F+4*ct}:{F+4*ct+3}], v[{F+8+4*s}:{F+8+4*s+3}], v[{d}:{d+3}]"
    a(f"  ds_read_b128 v[{K}:{K+3}], v{vKa}")
    a(vread(V1, 0))
    a("  s_waitcnt lgkmcnt(0)")
    a(qk(Sa, Qa))
    a("  s_nop 7\n  s_nop 3")

    def half(it, x, gms):
        Sx, Sy = (Sa, Sb) if x == "a" else (Sb, Sa)
        Ox, Oy = (Oa, Ob) if x == "a" else (Ob, Oa)
        Qy = Qb if x == "a" else Qa
        def e(i): a(f"  v_exp_f32 v{Sx+i}, v{Sx+i}")
        e(0); e(1); e(2)
        if x == "b": a("  s_waitcnt lgkmcnt(1)")
        a(smf(Oy, V2, Sy + 8))
        if x == "a": a(vread(V2, it * 1024 + 512))
        e(3); e(4); e(5)
        if x == "b": a("  s_waitcnt lgkmcnt(0)")
        a(qk(Sy, Qy))
        if x == "a": a(f"  ds_read_b128 v[{K}:{K+3}], v{vKa} offset:{(it+1)*1024}")
        e(6); e(7); e(8); e(9)
        if x == "a": a("  s_waitcnt lgkmcnt(2)")
        a(smf(Ox, V1, Sx))
        if x == "b": a(vread(V1, (it + 1) * 1024))
        e(10); e(11)
        if gms: a(gms[0])
        e(12); e(13)
        if gms: a(gms[1])
        e(14); e(15)

    def trip(it0, F, Fn, gemm):
        if gemm:
            for l in gloads(Fn): a(l)
            a("  s_waitcnt vmcnt(6)")
        order = [(0, 0), (0, 1), (0, 2), (0, 3), (1, 0), (1, 1), (1, 2), (1, 3)]
        g = [gm(ct, s, F) for ct, s in order] if gemm else None
        k = 0
        for it in (it0, it0 + 1):
            for x in "ab":
                half(it, x, g[k:k+2] if gemm else None); k += 2
    def prio(tag, p):
        a(f"  s_cbranch_vccz {name}_{tag}\n  s_setprio {p}\n{name}_{tag}:")
    a(f"  s_cbranch_vccnz {name}_pA\n  s_setprio 1\n{name}_pA:")
    a(f"  s_mov_b32 s{sIt}, 0\n.p2align 3")
    a.label(f"{name}_loop")
    prio("lp0", 2)
    trip(0, F0, F1, True)
    a(f"  s_cmp_eq_u32 s{sIt}, 6\n  s_cselect_b32 s{sT0}, 0x7ff00000, 0\n  v_add_u32 v{vGo}, s{sT0}, v{vGo}")
    for l in gloads(F0): a(l)
    a("  s_waitcnt vmcnt(6)")
    order = [(0, 0), (0, 1), (0, 2), (0, 3), (1, 0), (1, 1), (1, 2), (1, 3)]
    g = [gm(ct, s, F1) for ct, s in order]
    half(2, "a", g[0:2]); half(2, "b", g[2:4])
    prio("lp1", 0)
    half(3, "a", g[4:6]); half(3, "b", g[6:8])
    a(f"  v_add_u32 v{vKa}, 4096, v{vKa}\n  v_add_u32 v{vVa}, 4096, v{vVa}")
    a(f"  s_add_u32 s{sIt}, s{sIt}, 1\n  s_cmp_lt_u32 s{sIt}, 7\n  s_cbranch_scc1 {name}_loop")
    prio("tp0", 2)
    trip(0, None, None, False)
    half(2, "a", None); half(2, "b", None)
    prio("tp1", 0)
    half(3, "a", None); half(3, "b", None)
    a("  s_setprio 0")
    a("  s_nop 1")
    a(smf(Ob, V2, Sb + 8))
    x0 = Sa
    a(f"""
  s_mul_i32 s{sT0}, s{sW}, 3072
  s_add_u32 s{sT0}, s{sT0}, {XCH}
  v_add_u32 v{vT0}, s{sT0}, v{vL16}
  s_xor_b32 s{sT1}, s{sW}, 4
  s_mul_i32 s{sT1}, s{sT1}, 3072
  s_add_u32 s{sT1}, s{sT1}, {XCH}
  v_add_u32 v{vT1}, s{sT1}, v{vL16}
  s_nop 7
  s_nop 3
  ds_write_b128 v{vT0}, v[{Ob}:{Ob+3}]
  ds_write_b128 v{vT0}, v[{Ob+4}:{Ob+7}] offset:1024
  ds_write_b128 v{vT0}, v[{Ob+8}:{Ob+11}] offset:2048
  s_waitcnt vmcnt(0) lgkmcnt(0)
  s_barrier
  ds_read_b128 v[{x0}:{x0+3}], v{vT1}
  ds_read_b128 v[{x0+4}:{x0+7}], v{vT1} offset:1024
  ds_read_b128 v[{x0+8}:{x0+11}], v{vT1} offset:2048
""")
    def o_store(tag):
        a(f"  v_rcp_f32 v{vT2}, v{Oa+8}\n  s_nop 0")
        for i in range(0, 8, 2):
            a(f"  v_pk_mul_f32 v[{Oa+i}:{Oa+i+1}], v[{Oa+i}:{Oa+i+1}], v[{vT2}:{vT2+1}] op_sel_hi:[1,0]")
        for i in range(4):
            a(f"  v_cvt_pk_bf16_f32 v{Sb+i}, v{Oa+2*i}, v{Oa+2*i+1}")
        a(f"""
  v_bfe_u32 v{vT0}, v{vLane}, 4, 1
  v_lshlrev_b32 v{vT0}, 14, v{vT0}
  v_lshrrev_b32 v{vT1}, 5, v{vLane}
  v_lshl_add_u32 v{vT0}, v{vT1}, 8, v{vT0}
  v_and_b32 v{vT1}, 15, v{vLane}
  v_lshl_add_u32 v{vT0}, v{vT1}, 4, v{vT0}
  s_lshl_b32 s{sT0}, s{sRb}, 3
  s_lshl_b32 s{sT1}, s{sP4}, 1
  s_add_u32 s{sT0}, s{sT0}, s{sT1}
  s_lshl_b32 s{sT0}, s{sT0}, 4
  s_add_u32 s{sT0}, s{sT0}, s{sCb}
  s_lshl_b32 s{sT0}, s{sT0}, 10
  s_lshl_b32 s{sT1}, s{sKh}, 9
  s_add_u32 s{sT0}, s{sT0}, s{sT1}
  s_add_u32 s{sT0}, s{sT0}, {WS_OF}
  buffer_store_dwordx4 v[{Sb}:{Sb+3}], v{vT0}, s[{sWS}:{sWS+3}], s{sT0} offen {ST}
""")
    a("  s_waitcnt lgkmcnt(0)")
    for i in range(0, 8, 2):
        a(f"  v_pk_add_f32 v[{Oa+i}:{Oa+i+1}], v[{Oa+i}:{Oa+i+1}], v[{x0+i}:{x0+i+1}]")
    a(f"""
  v_add_f32 v{Oa+8}, v{Oa+8}, v{x0+8}
  v_cmp_nle_f32 vcc, {hex(f2u(2.0**-80))}, v{Oa+8}
  v_cmp_nge_f32 s[{sE}:{sE+1}], {hex(f2u(2.0**80))}, v{Oa+8}
""".replace(f"v_cmp_nge_f32 s[{sE}:{sE+1}], {hex(f2u(2.0**80))}, v{Oa+8}", f"v_mov_b32 v{vT0}, {hex(f2u(2.0**80))}\n  v_cmp_nge_f32 s[{sE}:{sE+1}], v{vT0}, v{Oa+8}"))
    a(f"""
  s_nop 4
  s_or_b64 vcc, vcc, s[{sE}:{sE+1}]
  s_cbranch_vccz {name}_safe
  v_mov_b32 v{vT0}, {FLAG}
  v_mov_b32 v{vT1}, 1
  ds_write_b32 v{vT0}, v{vT1}
{name}_safe:
""")
    o_store("fast")
    gemm_reduce(a, name, G, vL16, vT0, sCh, sKq, sT0, sT1, F0)
    z = F1
    for i in range(4):
        a(f"  v_mul_f32 v{z+i}, {hex(f2u(-LOG2E))}, v{G+i}\n  v_mul_f32 v{z+4+i}, {hex(f2u(-LOG2E))}, v{G+16+i}")
    for i in range(8): a(f"  v_exp_f32 v{z+i}, v{z+i}")
    a("  s_nop 0")
    for i in range(8): a(f"  v_add_f32 v{z+i}, 1.0, v{z+i}")
    for i in range(8): a(f"  v_rcp_f32 v{z+i}, v{z+i}")
    a("  s_nop 0")
    for i in range(4):
        a(f"  v_mul_f32 v{z+i}, v{z+i}, v{G+i}\n  v_mul_f32 v{z+4+i}, v{z+4+i}, v{G+16+i}")
    for i in range(4): a(f"  v_cvt_pk_bf16_f32 v{z+8+i}, v{z+2*i}, v{z+2*i+1}")
    a(f"""
  s_lshl_b32 s{sT0}, s{sRb}, 4
  s_add_u32 s{sT0}, s{sT0}, s{sCb}
  s_lshl_b32 s{sT0}, s{sT0}, 3
  s_add_u32 s{sT0}, s{sT0}, s{sW}
  s_lshl_b32 s{sT0}, s{sT0}, 10
  s_add_u32 s{sT0}, s{sT0}, {WS_GF}
  buffer_store_dwordx4 v[{z+8}:{z+11}], v{vL16}, s[{sWS}:{sWS+3}], s{sT0} offen {ST}
  v_mov_b32 v{vT0}, {FLAG}
  ds_read_b32 v{vT1}, v{vT0}
  s_waitcnt lgkmcnt(0)
  v_readfirstlane_b32 s{sT0}, v{vT1}
  s_nop 3
  s_cmp_eq_u32 s{sT0}, 0
  s_cbranch_scc1 {name}_exit
""")
    a("  s_barrier")
    a(f"  s_lshl_b32 s{sT0}, s{sW}, 10\n  s_add_u32 s{sT1}, s{sT0}, {WS_KF}")
    for i in range(16):
        a(f"  s_add_u32 m0, s{sT0}, {i*8192}\n  s_add_u32 s{sT2}, s{sT1}, {i*8192}\n  buffer_load_dwordx4 v{vL16}, s[{sWS}:{sWS+3}], s{sT2} offen lds")
    a(f"""
  s_waitcnt vmcnt(0)
  s_barrier
  v_mov_b32 v{vKa}, v{vL16}
  v_mov_b32 v{vT2}, 0xff800000
  s_mov_b32 s{sIt}, 0
{name}_mx:
  ds_read_b128 v[{K}:{K+3}], v{vKa}
  v_add_u32 v{vKa}, 1024, v{vKa}
  s_waitcnt lgkmcnt(0)
""")
    a(qk(Sa, Qa))
    a("  s_nop 7\n  s_nop 3")
    for i in range(0, 16, 2):
        a(f"  v_max3_f32 v{vT2}, v{Sa+i}, v{Sa+i+1}, v{vT2}")
    a(f"""
  s_add_u32 s{sIt}, s{sIt}, 1
  s_cmp_lt_u32 s{sIt}, 64
  s_cbranch_scc1 {name}_mx
  v_mov_b32 v{vT1}, v{vT2}
  s_nop 1
  v_permlane32_swap_b32 v{vT1}, v{vT2}
  v_max_f32 v{vT2}, v{vT1}, v{vT2}
""")
    for i in range(16): a(f"  v_sub_f32 v{Cm+i}, 0, v{vT2}\n  v_mov_b32 v{Oa+i}, 0")
    a(f"""
  v_mov_b32 v{vKa}, v{vL16}
  v_and_b32 v{vT0}, 15, v{vLane}
  v_lshlrev_b32 v{vT0}, 4, v{vT0}
  v_lshrrev_b32 v{vT1}, 5, v{vLane}
  v_lshl_add_u32 v{vT0}, v{vT1}, 8, v{vT0}
  v_add_u32 v{vVa}, 65536, v{vT0}
  s_mov_b32 s{sIt}, 0
{name}_ex:
  ds_read_b128 v[{K}:{K+3}], v{vKa}
""")
    a(vread(V1, 0)); a(vread(V2, 512))
    a(f"""
  v_add_u32 v{vKa}, 1024, v{vKa}
  v_add_u32 v{vVa}, 1024, v{vVa}
  s_waitcnt lgkmcnt(0)
""")
    a(qk(Sa, Qa, f"v[{Cm}:{Cm+15}]"))
    a("  s_nop 7\n  s_nop 3")
    for i in range(16): a(f"  v_exp_f32 v{Sa+i}, v{Sa+i}")
    a("  s_nop 1")
    a(smf(Oa, V1, Sa)); a(smf(Oa, V2, Sa + 8))
    a(f"""
  s_add_u32 s{sIt}, s{sIt}, 1
  s_cmp_lt_u32 s{sIt}, 64
  s_cbranch_scc1 {name}_ex
  s_nop 7
  s_nop 3
""")
    o_store("slow")
    a.label(f"{name}_exit")
    a("  s_endpgm")
    return a, V.hi, S.hi, LDS_K2
```

```python
from common import *
from k2 import gemm_reduce

LDS_K3 = 49152

def gen_k3(name, opt):
    a = Asm()
    S = Alloc("s", 4, 100); V = Alloc("v", 1, 256)
    sW, sRb, sCb, sCh, sKq, sPb, sJ = [S.get() for _ in range(7)]
    sWS = S.get(4, 4); sX = S.get(4, 4); sO = S.get(4, 4)
    pX = S.get(2, 2); pOUT = S.get(2, 2); pWS = S.get(2, 2)
    sT0, sT1, sT2 = [S.get() for _ in range(3)]
    vLane, vL16, vT0, vT1, vXo = [V.get() for _ in range(5)]
    vX = V.get(4, 4); vG = V.get(4, 4)
    G = V.get(32, 4)
    FO = V.get(64, 4)
    FW = V.get(32, 4)
    entry(a, name)
    a(f"  s_load_dwordx2 s[{pX}:{pX+1}], s[0:1], 0\n  s_load_dwordx2 s[{pOUT}:{pOUT+1}], s[0:1], 72\n  s_load_dwordx2 s[{pWS}:{pWS+1}], s[0:1], 88")
    ids(a, name, sW, sRb, sCb, vLane, vT0)
    a(f"""
  v_lshlrev_b32 v{vL16}, 4, v{vLane}
  s_and_b32 s{sCh}, s{sW}, 1
  s_lshr_b32 s{sKq}, s{sW}, 1
  s_lshl_b32 s{sPb}, s{sRb}, 1
  s_lshr_b32 s{sT0}, s{sCb}, 3
  s_add_u32 s{sPb}, s{sPb}, s{sT0}
  s_and_b32 s{sJ}, s{sCb}, 7
  s_waitcnt lgkmcnt(0)
""")
    srd(a, sWS, pWS, WS_SIZE); srd(a, sX, pX, 2048 * 1024); srd(a, sO, pOUT, 2048 * 1024)
    for ct in range(2):
        a(f"""
  s_lshl_b32 s{sT0}, s{sJ}, 2
  s_lshl_b32 s{sT1}, s{sCh}, 1
  s_add_u32 s{sT0}, s{sT0}, s{sT1}
  s_add_u32 s{sT0}, s{sT0}, {ct}
  s_lshl_b32 s{sT0}, s{sT0}, 4
  s_lshl_b32 s{sT1}, s{sKq}, 2
  s_add_u32 s{sT0}, s{sT0}, s{sT1}
  s_lshl_b32 s{sT0}, s{sT0}, 10
  s_add_u32 s{sT0}, s{sT0}, {WS_WOF}
""")
        for uu in range(4):
            r = FW + (ct * 4 + uu) * 4
            a(f"  buffer_load_dwordx4 v[{r}:{r+3}], v{vL16}, s[{sWS}:{sWS+3}], s{sT0} offen offset:{uu*1024}")
    for s in range(4):
        a(f"""
  s_add_u32 s{sT0}, s{sKq}, {s}
  s_and_b32 s{sT0}, s{sT0}, 3
  s_lshl_b32 s{sT1}, s{sPb}, 2
  s_add_u32 s{sT0}, s{sT0}, s{sT1}
  s_lshl_b32 s{sT0}, s{sT0}, 4
  s_lshl_b32 s{sT1}, s{sKq}, 2
  s_add_u32 s{sT0}, s{sT0}, s{sT1}
  s_lshl_b32 s{sT0}, s{sT0}, 10
  s_add_u32 s{sT0}, s{sT0}, {WS_OF}
""")
        for uu in range(4):
            r = FO + (s * 4 + uu) * 4
            a(f"  buffer_load_dwordx4 v[{r}:{r+3}], v{vL16}, s[{sWS}:{sWS+3}], s{sT0} offen offset:{uu*1024}")
    a(f"""
  s_lshl_b32 s{sT0}, s{sRb}, 4
  s_add_u32 s{sT0}, s{sT0}, s{sCb}
  s_lshl_b32 s{sT0}, s{sT0}, 3
  s_add_u32 s{sT0}, s{sT0}, s{sW}
  s_lshl_b32 s{sT0}, s{sT0}, 10
  s_add_u32 s{sT0}, s{sT0}, {WS_GF}
  buffer_load_dwordx4 v[{vG}:{vG+3}], v{vL16}, s[{sWS}:{sWS+3}], s{sT0} offen
  v_and_b32 v{vT0}, 15, v{vLane}
  v_lshlrev_b32 v{vT0}, 10, v{vT0}
  v_lshrrev_b32 v{vT1}, 4, v{vLane}
  v_lshl_add_u32 v{vT0}, v{vT1}, 4, v{vT0}
  s_lshl_b32 s{sT0}, s{sPb}, 2
  s_add_u32 s{sT0}, s{sT0}, s{sKq}
  s_lshl_b32 s{sT0}, s{sT0}, 14
  s_lshl_b32 s{sT1}, s{sJ}, 7
  s_add_u32 s{sT0}, s{sT0}, s{sT1}
  s_lshl_b32 s{sT1}, s{sCh}, 6
  s_add_u32 s{sT0}, s{sT0}, s{sT1}
  v_add_u32 v{vXo}, s{sT0}, v{vT0}
  s_nop 0
  buffer_load_dwordx4 v[{vX}:{vX+3}], v{vXo}, s[{sX}:{sX+3}], 0 offen
""")
    for s in range(4):
        a(f"  s_waitcnt vmcnt({2 + 4*(3-s)})")
        for ct in range(2):
            d = G + (ct * 4 + s) * 4
            for uu in range(4):
                A = FW + (ct * 4 + uu) * 4; B = FO + (s * 4 + uu) * 4
                c = "0" if uu == 0 else f"v[{d}:{d+3}]"
                a(f"  v_mfma_f32_16x16x32_bf16 v[{d}:{d+3}], v[{A}:{A+3}], v[{B}:{B+3}], {c}")
    a("  s_nop 7")
    gemm_reduce(a, name, G, vL16, vT0, sCh, sKq, sT0, sT1, FO)
    a("  s_waitcnt vmcnt(0)")
    t = FW
    for i in range(4):
        a(f"  v_lshlrev_b32 v{t+2*i}, 16, v{vG+i}\n  v_and_b32 v{t+2*i+1}, 0xffff0000, v{vG+i}")
        a(f"  v_lshlrev_b32 v{t+8+2*i}, 16, v{vX+i}\n  v_and_b32 v{t+8+2*i+1}, 0xffff0000, v{vX+i}")
    for i in range(4):
        src = G + (i // 2) * 16 + (i % 2) * 2
        a(f"  v_pk_fma_f32 v[{t+8+2*i}:{t+8+2*i+1}], v[{src}:{src+1}], v[{t+2*i}:{t+2*i+1}], v[{t+8+2*i}:{t+8+2*i+1}]")
    for i in range(4):
        a(f"  v_cvt_pk_bf16_f32 v{t+16+i}, v{t+8+2*i}, v{t+8+2*i+1}")
    a(f"  buffer_store_dwordx4 v[{t+16}:{t+19}], v{vXo}, s[{sO}:{sO+3}], 0 offen")
    a.label(f"{name}_exit")
    a("  s_endpgm")
    return a, V.hi, S.hi, LDS_K3
```
